```python
import torch

def _softmax(x, axis=-1):
    return torch.softmax(x, dim=axis)
def _gelu(x):
    return torch.nn.functional.gelu(x, approximate="tanh")
def _silu(x):
    return torch.nn.functional.silu(x)
def _sigmoid(x):
    return torch.sigmoid(x)
def _layernorm(x, axis=-1, eps=1e-5):
    m = x.mean(dim=axis, keepdim=True)
    v = x.var(dim=axis, keepdim=True, unbiased=False)
    return (x - m) / torch.sqrt(v + eps)
def _scatter_add(tgt, idx, src, axis=0):
    return tgt.clone().index_add_(axis, idx, src)
def _segment_sum(src, seg, n):
    out = torch.zeros((n,) + src.shape[1:], dtype=src.dtype)
    return out.index_add_(0, seg, src)
def _pad(x, pw):
    flat = tuple(v for pair in reversed(pw) for v in pair)
    return torch.nn.functional.pad(x, flat)

kernel_name = 'standalone__consistency_rf_step__diffusion'

def setup_inputs():

    _w = (lambda a: (lambda t: t.to(torch.bfloat16) if t.is_floating_point() else t)(torch.as_tensor(a)))
    B, C, HW = 2, 320, 128
    return {
        "x": _w((lambda *s: torch.randn(*s, dtype=torch.bfloat16) * 0.05)(B, C, HW, HW)),
        "v": _w((lambda *s: torch.randn(*s, dtype=torch.bfloat16) * 0.05)(B, C, HW, HW)),
        "sigma": _w(torch.rand(B).to(float)),
    }

def reference(x, v, sigma):
    s = sigma.reshape(-1, 1, 1, 1)
    return x - s * v
```

```python
import sys

HEADER = """; Kernarg layout for this problem (48 bytes, ptrs only, base s[0:1]):
"""
NAME = "standalone__consistency_rf_step__diffusion_kernel"
TOTAL = 2 * 320 * 128 * 128 * 2
HALF = TOTAL // 2


def gen(block=256, unroll=1, ldflag="", stflag="", layout="wg", xcd=0):
    ldflag = ldflag.replace("_", " ")
    stflag = stflag.replace("_", " ")
    wgbytes = block * 16 * unroll
    assert TOTAL % wgbytes == 0 and HALF % wgbytes == 0
    nwg = TOTAL // wgbytes
    L = []
    a = L.append
    a(HEADER + f"; @launch grid=({nwg},1,1) block=({block},1,1) lds=0")
    a('.amdgcn_target "amdgcn-amd-amdhsa--gfx950"')
    a(".text")
    a(f".globl {NAME}")
    a(".p2align 8")
    a(f".type {NAME},@function")
    a(f"{NAME}:")
    a("    s_load_dwordx4 s[4:7], s[0:1], 0")
    a("    s_load_dwordx4 s[8:11], s[0:1], 16")
    a(f"    s_cmp_ge_u32 s2, {nwg}")
    a("    s_cbranch_scc1 L_end")
    if xcd:
        assert nwg % 8 == 0
        per = nwg // 8
        a("    s_and_b32 s12, s2, 7")
        a("    s_lshr_b32 s13, s2, 3")
        a(f"    s_mul_i32 s12, s12, {per}")
        a("    s_add_u32 s2, s12, s13")
    a(f"    s_mul_i32 s3, s2, {wgbytes}")
    if layout == "wg":
        a("    v_lshl_add_u32 v1, v0, 4, s3              ; lane*16 + wg base")
        step = block * 16
    else:
        a("    v_and_b32 v1, 63, v0")
        a("    v_lshrrev_b32 v2, 6, v0")
        a(f"    v_mul_u32_u24 v2, {unroll*1024}, v2")
        a("    v_lshl_add_u32 v1, v1, 4, v2")
        a("    v_add_u32 v1, s3, v1")
        step = 1024
    addr = []
    nreg = 2
    base_regs = {0: 1}
    for u in range(unroll):
        off = u * step
        blk = off // 4096 * 4096
        if blk not in base_regs:
            base_regs[blk] = nreg
            a(f"    v_add_u32 v{nreg}, {blk}, v1")
            nreg += 1
        addr.append((base_regs[blk], off - blk))
    dbase = (nreg + 1) // 2 * 2
    X = [dbase + 8 * u for u in range(unroll)]
    V = [dbase + 8 * u + 4 for u in range(unroll)]
    T = dbase + 8 * unroll
    a("    s_mov_b32 s16, 0xffff0000")
    a("    s_waitcnt lgkmcnt(0)")
    a("    s_load_dword s14, s[8:9], 0")
    for u in range(unroll):
        r, o = addr[u]
        offs = f" offset:{o}" if o else ""
        a(f"    global_load_dwordx4 v[{V[u]}:{V[u]+3}], v{r}, s[6:7]{offs} {ldflag}".rstrip())
        a(f"    global_load_dwordx4 v[{X[u]}:{X[u]+3}], v{r}, s[4:5]{offs} {ldflag}".rstrip())
    a(f"    s_cmp_ge_u32 s3, {HALF}")
    a("    s_waitcnt lgkmcnt(0)")
    a("    s_lshl_b32 s15, s14, 16")
    a("    s_and_b32 s14, s14, s16")
    a(f"    s_cmp_ge_u32 s3, {HALF}")
    a("    s_cselect_b32 s18, s14, s15")
    a("    s_mov_b32 s19, s18")
    for u in range(unroll):
        a(f"    s_waitcnt vmcnt({2*(unroll-u)-1+u})")
        for d in range(4):
            t = T + 2 * (d % 2) * 0
            vd = V[u] + d
            p = T + 2 * d
            a(f"    v_lshlrev_b32 v{p}, 16, v{vd}")
            a(f"    v_and_b32 v{p+1}, s16, v{vd}")
        for d in range(4):
            p = T + 2 * d
            a(f"    v_pk_mul_f32 v[{p}:{p+1}], v[{p}:{p+1}], s[18:19]")
        for d in range(4):
            p = T + 2 * d
            vd = V[u] + d
            a(f"    v_cvt_pk_bf16_f32 v{vd}, v{p}, v{p+1}")
        for d in range(4):
            p = T + 2 * d
            vd = V[u] + d
            a(f"    v_lshlrev_b32 v{p}, 16, v{vd}")
            a(f"    v_and_b32 v{p+1}, s16, v{vd}")
        a(f"    s_waitcnt vmcnt({2*(unroll-u)-2+u})")
        for h in range(2):
            for dd in range(2):
                d = 2 * h + dd
                xd = X[u] + d
                q = V[u] + 2 * dd
                a(f"    v_lshlrev_b32 v{q}, 16, v{xd}")
                a(f"    v_and_b32 v{q+1}, s16, v{xd}")
            for dd in range(2):
                d = 2 * h + dd
                q = V[u] + 2 * dd
                p = T + 2 * d
                a(f"    v_pk_add_f32 v[{p}:{p+1}], v[{q}:{q+1}], v[{p}:{p+1}] neg_lo:[0,1] neg_hi:[0,1]")
        for d in range(4):
            p = T + 2 * d
            xd = X[u] + d
            a(f"    v_cvt_pk_bf16_f32 v{xd}, v{p}, v{p+1}")
        r, o = addr[u]
        offs = f" offset:{o}" if o else ""
        a(f"    global_store_dwordx4 v{r}, v[{X[u]}:{X[u]+3}], s[10:11]{offs} {stflag}".rstrip())
    a("L_end:")
    a("    s_endpgm")
    nv = T + 8
    a('.section .rodata,"a"')
    a(".p2align 6")
    a(f".amdhsa_kernel {NAME}")
    a(f"  .amdhsa_next_free_vgpr {nv}")
    a("  .amdhsa_next_free_sgpr 24")
    a(f"  .amdhsa_accum_offset {(nv+3)//4*4}")
    a("  .amdhsa_group_segment_fixed_size 0")
    a("  .amdhsa_kernarg_size 48")
    a("  .amdhsa_user_sgpr_count 2")
    a("  .amdhsa_user_sgpr_kernarg_segment_ptr 1")
    a("  .amdhsa_system_sgpr_workgroup_id_x 1")
    a("  .amdhsa_float_denorm_mode_32 3")
    a("  .amdhsa_float_denorm_mode_16_64 3")
    a(".end_amdhsa_kernel")
    return "\n".join(L) + "\n"


if __name__ == "__main__":
    out = sys.argv[1]
    kw = {}
    for s in sys.argv[2:]:
        k, v = s.split("=", 1)
        kw[k] = int(v) if v.lstrip("-").isdigit() else v
    open(out, "w").write(gen(**kw))
```

```python
import re, sys
src = open(sys.argv[1]).read()
k = int(sys.argv[3])
NAME = "standalone__consistency_rf_step__diffusion_kernel"
m = re.search(r"; @launch grid=\((\d+),1,1\) block=\((\d+),1,1\) lds=(\d+)", src)
nwg, block, lds = map(int, m.groups())
wpw = block // 64
nwaves = nwg * wpw
assert nwaves % 64 == 0
src = src.replace(m.group(0), f"; @launch kernel={NAME} grid=({nwg},1,1) block=({block},1,1) lds={lds}\n; @launch kernel=spin_kernel grid=(1,1,1) block=(64,1,1) lds=0")
src = src.replace(f"{NAME}:\n", f"""{NAME}:
    s_memrealtime s[40:41]
    s_load_dwordx2 s[44:45], s[0:1], 40
    s_mov_b32 s46, s2
    v_lshrrev_b32 v60, 6, v0
""")
src = src.replace("L_end:\n    s_endpgm", f"""    s_waitcnt vmcnt(0)
    s_memrealtime s[42:43]
    s_mul_i32 s46, s46, {wpw}
    v_add_u32 v60, s46, v60
    v_lshlrev_b32 v60, 3, v60
    s_waitcnt lgkmcnt(0)
    v_mov_b32 v62, s40
    v_mov_b32 v63, s42
    v_and_b32 v61, 63, v0
    v_cmp_eq_u32 vcc, 0, v61
    s_and_saveexec_b64 s[48:49], vcc
    global_store_dwordx2 v60, v[62:63], s[44:45]
L_end:
    s_endpgm
.globl spin_kernel
.p2align 8
.type spin_kernel,@function
spin_kernel:
    s_load_dwordx4 s[4:7], s[0:1], 32     ; debug, ws
    s_cmp_ge_u32 s2, 1
    s_cbranch_scc1 L_end2
    v_lshlrev_b32 v1, 3, v0
    v_mov_b32 v4, -1
    v_mov_b32 v5, 0
    s_mov_b32 s8, 0
    s_waitcnt lgkmcnt(0)
L_loop:
    global_load_dwordx2 v[2:3], v1, s[6:7]
    v_add_u32 v1, 512, v1
    s_add_u32 s8, s8, 1
    s_waitcnt vmcnt(0)
    v_min_u32 v4, v4, v2
    v_max_u32 v5, v5, v3
    s_cmp_lt_u32 s8, {nwaves//64}
    s_cbranch_scc1 L_loop
    ; cross-lane reduce with readlane loop
    s_mov_b32 s8, 0
    s_mov_b32 s10, -1
    s_mov_b32 s11, 0
L_red:
    s_nop 4
    v_readlane_b32 s12, v4, s8
    v_readlane_b32 s13, v5, s8
    s_add_u32 s8, s8, 1
    s_min_u32 s10, s10, s12
    s_max_u32 s11, s11, s13
    s_cmp_lt_u32 s8, 64
    s_cbranch_scc1 L_red
    s_sub_u32 s14, s11, s10            ; span in 10ns ticks
    s_min_u32 s14, s14, 10000          ; safety cap 100us
    s_mul_i32 s15, s14, {k}
    s_memrealtime s[16:17]
    s_waitcnt lgkmcnt(0)
    s_sub_u32 s20, s16, s11            ; now - last end
L_spin:
    s_memrealtime s[18:19]
    s_waitcnt lgkmcnt(0)
    s_sub_u32 s18, s18, s16
    s_cmp_lt_u32 s18, s15
    s_cbranch_scc1 L_spin
    v_mov_b32 v2, s14
    v_mov_b32 v3, s20
    v_mov_b32 v1, 0
    s_sub_u32 s4, s4, 512
    s_subb_u32 s5, s5, 0
    v_cmp_eq_u32 vcc, 0, v0
    s_and_saveexec_b64 s[22:23], vcc
    global_store_dwordx2 v1, v[2:3], s[4:5] offset:8
L_end2:
    s_endpgm""")
src = re.sub(r"\.amdhsa_next_free_vgpr \d+", ".amdhsa_next_free_vgpr 64", src)
src = re.sub(r"\.amdhsa_accum_offset \d+", ".amdhsa_accum_offset 64", src)
src = re.sub(r"\.amdhsa_next_free_sgpr \d+", ".amdhsa_next_free_sgpr 56", src)
src += """.p2align 6
.amdhsa_kernel spin_kernel
  .amdhsa_next_free_vgpr 8
  .amdhsa_next_free_sgpr 32
  .amdhsa_accum_offset 8
  .amdhsa_group_segment_fixed_size 0
  .amdhsa_kernarg_size 48
  .amdhsa_user_sgpr_count 2
  .amdhsa_user_sgpr_kernarg_segment_ptr 1
  .amdhsa_system_sgpr_workgroup_id_x 1
.end_amdhsa_kernel
"""
open(sys.argv[2], "w").write(src)
```

```python
import re, sys
src = open(sys.argv[1]).read()
op = sys.argv[3]; fld = int(sys.argv[4]); thr = int(sys.argv[5]) if len(sys.argv) > 5 else 0
k = int(sys.argv[6]) if len(sys.argv) > 6 else 100
NAME = "standalone__consistency_rf_step__diffusion_kernel"
m = re.search(r"; @launch grid=\((\d+),1,1\) block=\((\d+),1,1\) lds=(\d+)", src)
nwg, block, lds = map(int, m.groups())
assert nwg == 256
src = src.replace(m.group(0), f"; @launch kernel={NAME} grid=({nwg},1,1) block=({block},1,1) lds={lds}\n; @launch kernel=spin_kernel grid=(1,1,1) block=(64,1,1) lds=0")
L = []
a = L.append
a(".globl spin_kernel"); a(".p2align 8"); a(".type spin_kernel,@function"); a("spin_kernel:")
a("    s_load_dwordx4 s[4:7], s[0:1], 32")
a("    s_cmp_ge_u32 s2, 1")
a("    s_cbranch_scc1 L_end2")
a("    v_lshlrev_b32 v1, 5, v0")
a("    v_xor_b32 v2, 128, v1")
a("    v_add_u32 v3, 4096, v1")
a("    v_add_u32 v4, 4096, v2")
a("    s_waitcnt lgkmcnt(0)")
for i in range(4):
    ra, rb = (1, 2) if i < 2 else (3, 4)
    off = (i & 1) * 2048 + fld * 4
    a(f"    global_load_dword v{10+i}, v{ra}, s[6:7] offset:{off}")
    a(f"    global_load_dword v{14+i}, v{rb}, s[6:7] offset:{off}")
a("    s_waitcnt vmcnt(0)")
for i in range(4):
    v, p = 10 + i, 14 + i
    if op == "gt":
        a(f"    v_cmp_lt_u32 vcc, {thr}, v{v}")
        a(f"    v_cndmask_b32 v{v}, 0, 1, vcc")
    elif op == "same":
        a(f"    v_cmp_lt_u32 vcc, {thr}, v{v}")
        a(f"    v_cndmask_b32 v{v}, 0, 1, vcc")
        a(f"    v_cmp_lt_u32 vcc, {thr}, v{p}")
        a(f"    v_cndmask_b32 v{p}, 1, 0, vcc")
        a(f"    v_xor_b32 v{v}, v{v}, v{p}")
    elif op == "pmin":
        a(f"    v_min_u32 v{v}, v{v}, v{p}")
    elif op == "pmax":
        a(f"    v_max_u32 v{v}, v{v}, v{p}")
comb = {"min": "min_u32", "max": "max_u32"}.get(op, "add_u32")
for i in range(1, 4):
    a(f"    v_{comb} v10, v10, v{10+i}")
a(f"    s_mov_b32 s20, {'-1' if op == 'min' else 0}")
a("    s_mov_b32 s8, 0")
a("L_red:")
a("    s_nop 4")
a("    v_readlane_b32 s12, v10, s8")
a("    s_nop 2")
a(f"    s_{comb} s20, s20, s12")
a("    s_add_u32 s8, s8, 1")
a("    s_cmp_lt_u32 s8, 64")
a("    s_cbranch_scc1 L_red")
if op == "zero":
    a("    s_mov_b32 s20, 0")
a("    s_min_u32 s20, s20, 0x1000000")
a(f"    s_mul_i32 s15, s20, {k}")
if op in ("mean", "pmin", "pmax"):
    a("    s_lshr_b32 s15, s15, 8")
a("    s_min_u32 s15, s15, 2000000")
a(f"    s_mul_hi_u32 s15, s15, {(1<<32)//10+1}")
a("    s_memrealtime s[16:17]")
a("    s_waitcnt lgkmcnt(0)")
a("L_spin:")
a("    s_memrealtime s[18:19]")
a("    s_waitcnt lgkmcnt(0)")
a("    s_sub_u32 s18, s18, s16")
a("    s_cmp_lt_u32 s18, s15")
a("    s_cbranch_scc1 L_spin")
a("    v_mov_b32 v20, s20")
a("    v_mov_b32 v1, 0")
a("    v_cmp_eq_u32 vcc, 0, v0")
a("    s_and_saveexec_b64 s[22:23], vcc")
a("    global_store_dword v1, v20, s[4:5]")
a("L_end2:")
a("    s_endpgm")
src = src.replace('.section .rodata,"a"', "\n".join(L) + '\n.section .rodata,"a"')
src += """.p2align 6
.amdhsa_kernel spin_kernel
  .amdhsa_next_free_vgpr 24
  .amdhsa_next_free_sgpr 64
  .amdhsa_accum_offset 24
  .amdhsa_group_segment_fixed_size 0
  .amdhsa_kernarg_size 48
  .amdhsa_user_sgpr_count 2
  .amdhsa_user_sgpr_kernarg_segment_ptr 1
  .amdhsa_system_sgpr_workgroup_id_x 1
.end_amdhsa_kernel
"""
open(sys.argv[2], "w").write(src)
```

```python
import sys
from gen1 import HEADER, NAME, TOTAL, HALF

NCH = TOTAL // 1024


def gen(block=256, nwg=1280, depth=4, layout="strided", mode="rw", ldflag="", stflag="", xcd=0, prof=0, xldflag=None, prio=0):
    ldflag = ldflag.replace("_", " ")
    stflag = stflag.replace("_", " ")
    xldflag = ldflag if xldflag is None else xldflag.replace("_", " ")
    wpw = block // 64
    waves = nwg * wpw
    assert NCH % waves == 0, (NCH, waves)
    n = NCH // waves
    D = min(depth, n)
    L = []
    a = L.append
    a(HEADER + f"; @launch grid=({nwg},1,1) block=({block},1,1) lds=0")
    a('.amdgcn_target "amdgcn-amd-amdhsa--gfx950"')
    a(".text")
    a(f".globl {NAME}")
    a(".p2align 8")
    a(f".type {NAME},@function")
    a(f"{NAME}:")
    if prof:
        a("    s_memrealtime s[40:41]")
        a("    s_load_dwordx2 s[50:51], s[0:1], 40")
        a("    s_mov_b32 s52, s2")
    a("    s_load_dwordx2 s[4:5], s[0:1], 0          ; x")
    a("    s_load_dwordx2 s[8:9], s[0:1], 8          ; v")
    a("    s_load_dwordx4 s[16:19], s[0:1], 16")
    a(f"    s_cmp_ge_u32 s2, {nwg}")
    a("    s_cbranch_scc1 L_end")
    if xcd:
        assert nwg % 8 == 0
        per = nwg // 8
        a("    s_and_b32 s12, s2, 7")
        a("    s_lshr_b32 s13, s2, 3")
        a(f"    s_mul_i32 s12, s12, {per}")
        a("    s_add_u32 s2, s12, s13")
    a(f"    s_mov_b32 s6, {TOTAL}")
    a("    s_mov_b32 s7, 0x20000")
    a(f"    s_mov_b32 s10, {TOTAL}")
    a("    s_mov_b32 s11, 0x20000")
    a(f"    s_mov_b32 s14, {TOTAL}")
    a("    s_mov_b32 s15, 0x20000")
    a("    s_mov_b32 s20, 0xffff0000")
    a("    v_lshrrev_b32 v2, 6, v0")
    a("    v_and_b32 v1, 63, v0")
    a("    v_readfirstlane_b32 s21, v2")
    a("    v_lshlrev_b32 v1, 4, v1                   ; lane*16")
    if layout == "strided":
        a(f"    s_mul_i32 s22, s2, {wpw}")
        a("    s_add_u32 s22, s22, s21")
        a("    s_lshl_b32 s22, s22, 10")
        sstride = waves * 1024
    elif layout == "blocked":
        a(f"    s_mul_i32 s22, s2, {wpw}")
        a("    s_add_u32 s22, s22, s21")
        a(f"    s_mul_i32 s22, s22, {n*1024}")
        sstride = 1024
    elif layout == "wgblocked":
        a(f"    s_mul_i32 s22, s2, {wpw*n*1024}")
        a("    s_lshl_b32 s23, s21, 10")
        a("    s_add_u32 s22, s22, s23")
        sstride = wpw * 1024
    else:
        raise ValueError(layout)
    def stage_off(j):
        off = j * sstride
        return off // 4096 * 4096, off % 4096
    sregs = {}
    nexts = 60
    pre = []
    for j in range(n):
        b, o = stage_off(j)
        if b not in sregs:
            sregs[b] = nexts
            nexts += 1
            pre.append(f"    s_add_u32 s{sregs[b]}, s22, {b}" if b else f"    s_mov_b32 s{sregs[b]}, s22")
    assert nexts <= 100, nexts
    for p in pre:
        a(p)
    dbase = 4
    X = [dbase + 8 * d for d in range(D)]
    V = [dbase + 8 * d + 4 for d in range(D)]
    T = dbase + 8 * D
    a("    s_waitcnt lgkmcnt(0)")
    if prof:
        a("    s_memrealtime s[42:43]")
    a("    s_load_dword s24, s[16:17], 0")
    a("    s_mov_b32 s12, s18")
    a("    s_mov_b32 s13, s19")
    q = []

    def issue_loads(j):
        d = j % D
        b, o = stage_off(j)
        offs = f" offset:{o}" if o else ""
        if mode in ("rw", "r"):
            a(f"    buffer_load_dwordx4 v[{V[d]}:{V[d]+3}], v1, s[8:11], s{sregs[b]} offen{offs} {ldflag}".rstrip())
            q.append(("V", j))
        if mode in ("rw", "r", "rx"):
            a(f"    buffer_load_dwordx4 v[{X[d]}:{X[d]+3}], v1, s[4:7], s{sregs[b]} offen{offs} {xldflag}".rstrip())
            q.append(("X", j))

    def wait_for(tag):
        if tag not in q:
            return
        i = q.index(tag)
        rem = len(q) - 1 - i
        assert rem <= 63
        a(f"    s_waitcnt vmcnt({rem})")
        del q[: i + 1]

    for j in range(D):
        issue_loads(j)
    a("    s_waitcnt lgkmcnt(0)")
    a("    s_lshl_b32 s25, s24, 16")
    a("    s_and_b32 s24, s24, s20")
    first = True
    for j in range(n):
        d = j % D
        b, o = stage_off(j)
        a(f"    s_cmp_ge_u32 s{sregs[b]}, {HALF - o}")
        a("    s_cselect_b32 s26, s24, s25")
        a("    s_cselect_b32 s27, s24, s25")
        wait_for(("V", j))
        if prof and first and mode != "w":
            if mode == "rx":
                wait_for(("X", j))
            a("    s_memrealtime s[44:45]")
            first = False
        if mode == "rw":
            for k in range(4):
                p = T + 2 * k
                a(f"    v_lshlrev_b32 v{p}, 16, v{V[d]+k}")
                a(f"    v_and_b32 v{p+1}, s20, v{V[d]+k}")
            for k in range(4):
                p = T + 2 * k
                a(f"    v_pk_mul_f32 v[{p}:{p+1}], v[{p}:{p+1}], s[26:27]")
            for k in range(4):
                p = T + 2 * k
                a(f"    v_cvt_pk_bf16_f32 v{V[d]+k}, v{p}, v{p+1}")
            for k in range(4):
                p = T + 2 * k
                a(f"    v_lshlrev_b32 v{p}, 16, v{V[d]+k}")
                a(f"    v_and_b32 v{p+1}, s20, v{V[d]+k}")
        wait_for(("X", j))
        if prof and j == n - 1:
            a("    s_memrealtime s[46:47]")
        if mode == "rw":
            for h in range(2):
                for dd in range(2):
                    k = 2 * h + dd
                    qq = V[d] + 2 * dd
                    a(f"    v_lshlrev_b32 v{qq}, 16, v{X[d]+k}")
                    a(f"    v_and_b32 v{qq+1}, s20, v{X[d]+k}")
                for dd in range(2):
                    k = 2 * h + dd
                    qq = V[d] + 2 * dd
                    p = T + 2 * k
                    a(f"    v_pk_add_f32 v[{p}:{p+1}], v[{qq}:{qq+1}], v[{p}:{p+1}] neg_lo:[0,1] neg_hi:[0,1]")
            O = T + 8 + 4 * (j % 2)
            for k in range(4):
                p = T + 2 * k
                a(f"    v_cvt_pk_bf16_f32 v{O+k}, v{p}, v{p+1}")
        elif mode == "rx":
            O = T + 8 + 4 * (j % 2)
            for k in range(4):
                a(f"    v_mov_b32 v{O+k}, v{X[d]+k}")
        else:
            O = T + 8
        if j + D < n:
            issue_loads(j + D)
        if mode in ("rw", "w", "rx"):
            offs = f" offset:{o}" if o else ""
            a(f"    buffer_store_dwordx4 v[{O}:{O+3}], v1, s[12:15], s{sregs[b]} offen{offs} {stflag}".rstrip())
            q.append(("S", j))
    nv = T + 16
    if prof:
        b = (nv + 3) // 4 * 4
        a("    s_waitcnt vmcnt(0)")
        a("    s_memrealtime s[48:49]")
        a("    s_getreg_b32 s53, hwreg(HW_REG_XCC_ID)")
        a("    s_getreg_b32 s54, hwreg(HW_REG_HW_ID)")
        a(f"    s_mul_i32 s52, s52, {wpw}")
        a("    s_add_u32 s52, s52, s21")
        a("    s_lshl_b32 s52, s52, 5")
        a(f"    v_mov_b32 v{b}, s52")
        a("    s_waitcnt lgkmcnt(0)")
        if mode == "w":
            a("    s_mov_b32 s44, s42")
        a(f"    v_mov_b32 v{b+4}, s40")
        a(f"    v_mov_b32 v{b+5}, s42")
        a(f"    v_mov_b32 v{b+6}, s44")
        a(f"    v_mov_b32 v{b+7}, s46")
        a(f"    v_mov_b32 v{b+8}, s48")
        a(f"    v_mov_b32 v{b+9}, s53")
        a(f"    v_mov_b32 v{b+10}, s54")
        a(f"    v_mov_b32 v{b+11}, 0")
        a(f"    v_cmp_eq_u32 vcc, 0, v1")
        a("    s_and_saveexec_b64 s[56:57], vcc")
        a(f"    global_store_dwordx4 v{b}, v[{b+4}:{b+7}], s[50:51]")
        a(f"    global_store_dwordx4 v{b}, v[{b+8}:{b+11}], s[50:51] offset:16")
        nv = b + 12
    a("L_end:")
    a("    s_endpgm")
    a('.section .rodata,"a"')
    a(".p2align 6")
    a(f".amdhsa_kernel {NAME}")
    a(f"  .amdhsa_next_free_vgpr {nv}")
    a(f"  .amdhsa_next_free_sgpr {max(nexts, 60)}")
    a(f"  .amdhsa_accum_offset {(nv+3)//4*4}")
    a("  .amdhsa_group_segment_fixed_size 0")
    a("  .amdhsa_kernarg_size 48")
    a("  .amdhsa_user_sgpr_count 2")
    a("  .amdhsa_user_sgpr_kernarg_segment_ptr 1")
    a("  .amdhsa_system_sgpr_workgroup_id_x 1")
    a("  .amdhsa_float_denorm_mode_32 3")
    a("  .amdhsa_float_denorm_mode_16_64 3")
    a(".end_amdhsa_kernel")
    return "\n".join(L) + "\n"


if __name__ == "__main__":
    out = sys.argv[1]
    kw = {}
    for s in sys.argv[2:]:
        k, v = s.split("=", 1)
        kw[k] = int(v) if v.lstrip("-").isdigit() else v
    open(out, "w").write(gen(**kw))
```

```python
import sys
from gen1 import HEADER, NAME, TOTAL, HALF


def math(a, X, V, T, w1, w2):
    a(f"    s_waitcnt vmcnt({w1})")
    for d in range(4):
        p = T + 2 * d
        a(f"    v_lshlrev_b32 v{p}, 16, v{V+d}")
        a(f"    v_and_b32 v{p+1}, s16, v{V+d}")
    for d in range(4):
        p = T + 2 * d
        a(f"    v_pk_mul_f32 v[{p}:{p+1}], v[{p}:{p+1}], s[18:19]")
    for d in range(4):
        p = T + 2 * d
        a(f"    v_cvt_pk_bf16_f32 v{V+d}, v{p}, v{p+1}")
    for d in range(4):
        p = T + 2 * d
        a(f"    v_lshlrev_b32 v{p}, 16, v{V+d}")
        a(f"    v_and_b32 v{p+1}, s16, v{V+d}")
    a(f"    s_waitcnt vmcnt({w2})")
    for h in range(2):
        for dd in range(2):
            d = 2 * h + dd
            q = V + 2 * dd
            a(f"    v_lshlrev_b32 v{q}, 16, v{X+d}")
            a(f"    v_and_b32 v{q+1}, s16, v{X+d}")
        for dd in range(2):
            d = 2 * h + dd
            q = V + 2 * dd
            p = T + 2 * d
            a(f"    v_pk_add_f32 v[{p}:{p+1}], v[{q}:{q+1}], v[{p}:{p+1}] neg_lo:[0,1] neg_hi:[0,1]")
    for d in range(4):
        p = T + 2 * d
        a(f"    v_cvt_pk_bf16_f32 v{X+d}, v{p}, v{p+1}")


def gen(ldflag="nt", stflag="none", stB="sc0_sc1", zm="m0CFF0", d=0, pol=0, rmask=31):
    fx = lambda s: s.replace("_", " ").replace("none", "")
    ldflag, stflag, stB = fx(ldflag), fx(stflag), fx(stB)
    unroll, block = 4, 256
    wgbytes = block * 16 * unroll
    nwg = TOTAL // wgbytes
    assert HALF % (2 * wgbytes) == 0 and 0 <= d < 64
    L = []
    a = L.append
    a(HEADER + f"; @launch grid=({nwg},1,1) block=({block},1,1) lds=0")
    a('.amdgcn_target "amdgcn-amd-amdhsa--gfx950"')
    a(".text"); a(f".globl {NAME}"); a(".p2align 8"); a(f".type {NAME},@function"); a(f"{NAME}:")
    a("    s_load_dwordx4 s[4:7], s[0:1], 0")
    a("    s_load_dwordx4 s[8:11], s[0:1], 16")
    a(f"    s_cmp_ge_u32 s2, {nwg}")
    a("    s_cbranch_scc1 L_end")
    a(f"    s_lshl_b32 s3, s2, 14")
    a("    v_lshl_add_u32 v1, v0, 4, s3")
    a("    v_add_u32 v2, 4096, v1")
    a("    v_add_u32 v3, 8192, v1")
    a("    v_add_u32 v4, 12288, v1")
    a("    s_lshr_b32 s20, s2, 8")
    X = [6 + 8 * u for u in range(5)]
    V = [10 + 8 * u for u in range(5)]
    T = 46
    if d:
        if rmask != 31:
            a(f"    s_lshr_b32 s12, {rmask}, s20")
            a("    s_and_b32 s12, s12, 1")
            a(f"    s_mul_i32 s17, s12, {d}")
        else:
            a(f"    s_mov_b32 s17, {d}")
        a(f"    s_bitcmp{1 if pol == 0 else 0}_b32 s2, 0")
        a("    s_cselect_b32 s12, s17, 0")
        a("    s_cselect_b32 s13, 0, s17")
        a("    s_sub_u32 s12, 256, s12")
        a("    v_cmp_gt_u32 s[22:23], s13, v0")
        a("    v_cmp_gt_u32 s[24:25], s12, v0")
        if pol == 0:
            a(f"    v_add_u32 v5, {2*wgbytes - 16*d}, v1")
        else:
            a(f"    v_subrev_u32 v5, {16*d}, v1")
    a("    s_mov_b32 s16, 0xffff0000")
    tab = 0
    for i, p in enumerate(str(zm).lstrip("m")):
        tab |= int(p, 16) << (i * 4)
    a("    s_lshl_b32 s20, s20, 2")
    a(f"    s_lshr_b32 s21, {hex(tab)}, s20")
    if d:
        a("    s_cmp_eq_u64 s[22:23], 0")
    a("    s_waitcnt lgkmcnt(0)")
    a("    s_load_dword s14, s[8:9], 0")
    if d:
        a("    s_cbranch_scc1 L_noE1")
        a("    s_mov_b64 exec, s[22:23]")
        a(f"    global_load_dwordx4 v[{V[4]}:{V[4]+3}], v5, s[6:7] {ldflag}".rstrip())
        a(f"    global_load_dwordx4 v[{X[4]}:{X[4]+3}], v5, s[4:5] {ldflag}".rstrip())
        a("    s_mov_b64 exec, -1")
        a("L_noE1:")
    for u in range(4):
        if d and u == 3: a("    s_mov_b64 exec, s[24:25]")
        a(f"    global_load_dwordx4 v[{V[u]}:{V[u]+3}], v{1+u}, s[6:7] {ldflag}".rstrip())
        a(f"    global_load_dwordx4 v[{X[u]}:{X[u]+3}], v{1+u}, s[4:5] {ldflag}".rstrip())
        if d and u == 3: a("    s_mov_b64 exec, -1")
    a("    s_waitcnt lgkmcnt(0)")
    a("    s_lshl_b32 s15, s14, 16")
    a("    s_and_b32 s14, s14, s16")
    a(f"    s_cmp_ge_u32 s3, {HALF}")
    a("    s_cselect_b32 s18, s14, s15")
    a("    s_mov_b32 s19, s18")

    def store(tag, bit, r, x):
        st = lambda fl: a(f"    global_store_dwordx4 v{r}, v[{x}:{x+3}], s[10:11] {fl}".rstrip())
        if tab == 0:
            st(stflag); return
        a(f"    s_bitcmp1_b32 s21, {bit}")
        a(f"    s_cbranch_scc1 L_sB{tag}")
        st(stflag)
        a(f"    s_branch L_sC{tag}")
        a(f"L_sB{tag}:")
        st(stB)
        a(f"L_sC{tag}:")
    if d:
        a("    s_cmp_eq_u64 s[22:23], 0")
        a("    s_cbranch_scc1 L_noE2")
        math(a, X[4], V[4], T, 9, 8)
        a("    s_mov_b64 exec, s[22:23]")
        store("E", 0, 5, X[4])
        a("    s_mov_b64 exec, -1")
        a("L_noE2:")
    for u in range(4):
        math(a, X[u], V[u], T, 2 * (4 - u) - 1 + u, 2 * (4 - u) - 2 + u)
        if d and u == 3: a("    s_mov_b64 exec, s[24:25]")
        store(str(u), u, 1 + u, X[u])
    a("L_end:")
    a("    s_endpgm")
    nv = T + 8
    a('.section .rodata,"a"'); a(".p2align 6")
    a(f".amdhsa_kernel {NAME}")
    a(f"  .amdhsa_next_free_vgpr {nv}")
    a("  .amdhsa_next_free_sgpr 32")
    a(f"  .amdhsa_accum_offset {(nv+3)//4*4}")
    a("  .amdhsa_group_segment_fixed_size 0")
    a("  .amdhsa_kernarg_size 48")
    a("  .amdhsa_user_sgpr_count 2")
    a("  .amdhsa_user_sgpr_kernarg_segment_ptr 1")
    a("  .amdhsa_system_sgpr_workgroup_id_x 1")
    a("  .amdhsa_float_denorm_mode_32 3")
    a("  .amdhsa_float_denorm_mode_16_64 3")
    a(".end_amdhsa_kernel")
    return "\n".join(L) + "\n"


if __name__ == "__main__":
    out = sys.argv[1]
    kw = {}
    for s in sys.argv[2:]:
        k, v = s.split("=", 1)
        kw[k] = int(v) if v.lstrip("-").isdigit() else v
    open(out, "w").write(gen(**kw))
```

```python
import sys
from gen1 import HEADER, NAME, TOTAL, HALF
from gen19 import math


def gen(ldflag="nt", stflag="none", stB="sc0_sc1", zm="m0CFF0", w=None, eo=0):
    fx = lambda s: s.replace("_", " ").replace("none", "")
    ldflag, stflag, stB = fx(ldflag), fx(stflag), fx(stB)
    if w is None:
        w = [eo if j % 2 == 0 else -eo for j in range(8)]
    else:
        w = [int(t) for t in str(w).lstrip("w").split(".")]
    assert len(w) == 8 and sum(w) == 0 and all(t % 8 == 0 and -248 <= t <= 256 for t in w)
    off = [sum(w[:j]) for j in range(8)]
    assert all(-1024 <= t <= 1016 for t in off)
    tn = sum(((t // 8) & 255) << (8 * j) for j, t in enumerate(w))
    to = sum(((t // 8) & 255) << (8 * j) for j, t in enumerate(off))
    hasE2 = max(w) > 0
    partE1 = min(w) < 0
    skipE1 = min(w) <= -64
    nwg = 1280
    assert HALF % (128 << 10) == 0
    L = []
    a = L.append
    a(HEADER + f"; @launch grid=({nwg},1,1) block=(256,1,1) lds=0")
    a('.amdgcn_target "amdgcn-amd-amdhsa--gfx950"')
    a(".text"); a(f".globl {NAME}"); a(".p2align 8"); a(f".type {NAME},@function"); a(f"{NAME}:")
    a("    s_load_dwordx4 s[4:7], s[0:1], 0")
    a("    s_load_dwordx4 s[8:11], s[0:1], 16")
    a(f"    s_cmp_ge_u32 s2, {nwg}")
    a("    s_cbranch_scc1 L_end")
    a("    s_lshl_b32 s3, s2, 14")
    if hasE2 or partE1:
        a("    s_and_b32 s12, s2, 7")
        a("    s_lshl_b32 s12, s12, 3")
        a(f"    s_mov_b32 s26, {hex(to & 0xffffffff)}")
        a(f"    s_mov_b32 s27, {hex(to >> 32)}")
        a(f"    s_mov_b32 s28, {hex(tn & 0xffffffff)}")
        a(f"    s_mov_b32 s29, {hex(tn >> 32)}")
        a("    s_lshr_b64 s[26:27], s[26:27], s12")
        a("    s_lshr_b64 s[28:29], s[28:29], s12")
        a("    s_sext_i32_i8 s26, s26")
        a("    s_sext_i32_i8 s28, s28")
        a("    s_lshl_b32 s26, s26, 7")
        a("    s_lshl_b32 s28, s28, 3")
        a("    s_add_u32 s17, s3, s26")
        a("    s_add_u32 s29, s28, 256")
        a("    v_lshl_add_u32 v1, v0, 4, s17")
        a("    v_cmp_gt_i32 s[22:23], s28, v0            ; E2 lanes")
        a("    v_cmp_gt_i32 s[24:25], s29, v0            ; E1 lanes")
    else:
        a("    v_lshl_add_u32 v1, v0, 4, s3")
    a("    v_add_u32 v2, 4096, v1")
    a("    v_add_u32 v3, 8192, v1")
    a("    v_add_u32 v4, 12288, v1")
    if hasE2: a("    v_add_u32 v5, 16384, v1")
    X = [6 + 8 * u for u in range(5)]
    V = [10 + 8 * u for u in range(5)]
    T = 46
    a("    s_mov_b32 s16, 0xffff0000")
    tab = 0
    for i, p in enumerate(str(zm).lstrip("m")):
        tab |= int(p, 16) << (i * 4)
    if tab:
        a("    s_lshr_b32 s20, s2, 8")
        a("    s_lshl_b32 s20, s20, 2")
        a(f"    s_lshr_b32 s21, {hex(tab)}, s20")
    if hasE2:
        a("    s_cmp_eq_u64 s[22:23], 0")
    a("    s_waitcnt lgkmcnt(0)")
    a("    s_load_dword s14, s[8:9], 0")
    def ld(u):
        a(f"    global_load_dwordx4 v[{V[u]}:{V[u]+3}], v{1+u}, s[6:7] {ldflag}".rstrip())
        a(f"    global_load_dwordx4 v[{X[u]}:{X[u]+3}], v{1+u}, s[4:5] {ldflag}".rstrip())
    if hasE2:
        a("    s_cbranch_scc1 L_noE2a")
        a("    s_mov_b64 exec, s[22:23]")
        ld(4)
        a("L_noE2a:")
    if partE1 or hasE2:
        a("    s_mov_b64 exec, s[24:25]")
        if skipE1: a("    s_cbranch_execz L_noE1a")
    ld(3)
    if partE1 or hasE2:
        if skipE1: a("L_noE1a:")
        a("    s_mov_b64 exec, -1")
    for u in range(3): ld(u)
    a("    s_waitcnt lgkmcnt(0)")
    a("    s_lshl_b32 s15, s14, 16")
    a("    s_and_b32 s14, s14, s16")
    a(f"    s_cmp_ge_u32 s3, {HALF}")
    a("    s_cselect_b32 s18, s14, s15")
    a("    s_mov_b32 s19, s18")

    def store(tag, bit, u):
        st = lambda fl: a(f"    global_store_dwordx4 v{1+u}, v[{X[u]}:{X[u]+3}], s[10:11] {fl}".rstrip())
        if tab == 0:
            st(stflag); return
        a(f"    s_bitcmp1_b32 s21, {bit}")
        a(f"    s_cbranch_scc1 L_sB{tag}")
        st(stflag)
        a(f"    s_branch L_sC{tag}")
        a(f"L_sB{tag}:")
        st(stB)
        a(f"L_sC{tag}:")
    if hasE2:
        a("    s_cmp_eq_u64 s[22:23], 0")
        a("    s_cbranch_scc1 L_noE2b")
        math(a, X[4], V[4], T, 9, 8)
        a("    s_mov_b64 exec, s[22:23]")
        store("E2", 0, 4)
        a("    s_mov_b64 exec, -1")
        a("L_noE2b:")
    if skipE1:
        a("    s_cmp_eq_u64 s[24:25], 0")
        a("    s_cbranch_scc1 L_noE1b")
    math(a, X[3], V[3], T, 7, 6)
    if partE1: a("    s_mov_b64 exec, s[24:25]")
    store("E1", 0, 3)
    if partE1: a("    s_mov_b64 exec, -1")
    if skipE1: a("L_noE1b:")
    e1 = 0 if skipE1 else 1
    for u in range(3):
        math(a, X[u], V[u], T, 2 * (3 - u) - 1 + u + e1, 2 * (3 - u) - 2 + u + e1)
        store(str(u), u + 1, u)
    a("L_end:")
    a("    s_endpgm")
    nv = T + 8
    a('.section .rodata,"a"'); a(".p2align 6")
    a(f".amdhsa_kernel {NAME}")
    a(f"  .amdhsa_next_free_vgpr {nv}")
    a("  .amdhsa_next_free_sgpr 32")
    a(f"  .amdhsa_accum_offset {(nv+3)//4*4}")
    a("  .amdhsa_group_segment_fixed_size 0")
    a("  .amdhsa_kernarg_size 48")
    a("  .amdhsa_user_sgpr_count 2")
    a("  .amdhsa_user_sgpr_kernarg_segment_ptr 1")
    a("  .amdhsa_system_sgpr_workgroup_id_x 1")
    a("  .amdhsa_float_denorm_mode_32 3")
    a("  .amdhsa_float_denorm_mode_16_64 3")
    a(".end_amdhsa_kernel")
    return "\n".join(L) + "\n"


if __name__ == "__main__":
    out = sys.argv[1]
    kw = {}
    for s in sys.argv[2:]:
        k, v = s.split("=", 1)
        kw[k] = int(v) if v.lstrip("-").isdigit() else v
    open(out, "w").write(gen(**kw))
```

```python
import sys
from gen1 import HEADER, NAME, TOTAL, HALF
from gen19 import math


def gen(ldflag="nt", stflag="none", stB="sc0_sc1", lo=320, hi=1024, dup=0, order="vx", sig=1):
    fx = lambda s: s.replace("_", " ").replace("none", "")
    ldflag, stflag, stB = fx(ldflag), fx(stflag), fx(stB)
    nwg = 1280
    L = []
    a = L.append
    a(HEADER + f"; @launch grid=({nwg},1,1) block=(256,1,1) lds=0")
    a('.amdgcn_target "amdgcn-amd-amdhsa--gfx950"')
    a(".text"); a(f".globl {NAME}"); a(".p2align 8"); a(f".type {NAME},@function"); a(f"{NAME}:")
    a("    s_load_dwordx8 s[4:11], s[0:1], 0")
    a("    s_lshl_b32 s3, s2, 14")
    a(f"    s_cmpk_ge_u32 s2, {nwg}")
    a("    s_cbranch_scc1 L_end")
    a("    s_bitset1_b32 s3, 12")
    a("    v_lshl_add_u32 v1, v0, 4, s3")
    a("    v_add_u32 v2, 0x2000, v1")
    X = [4 + 8 * u for u in range(4)]
    V = [8 + 8 * u for u in range(4)]
    T = 36
    AD = [(1, " offset:-4096"), (1, ""), (2, " offset:-4096"), (2, "")]
    a("    s_waitcnt lgkmcnt(0)")
    if sig == 0:
        a("    s_load_dword s14, s[8:9], 0")
    for u in range(4):
        r, o = AD[u]
        a(f"    global_load_dwordx4 v[{V[u]}:{V[u]+3}], v{r}, s[6:7]{o} {ldflag}".rstrip())
        a(f"    global_load_dwordx4 v[{X[u]}:{X[u]+3}], v{r}, s[4:5]{o} {ldflag}".rstrip())
    if sig == 1:
        a("    s_load_dword s14, s[8:9], 0")
    a("    s_mov_b32 s16, 0xffff0000")
    a(f"    s_sub_u32 s20, s2, {lo}")
    a("    s_waitcnt lgkmcnt(0)")
    a("    s_lshl_b32 s15, s14, 16")
    a("    s_and_b32 s14, s14, s16")
    a(f"    s_cmpk_ge_u32 s2, {nwg // 2}")
    a("    s_cselect_b32 s18, s14, s15")
    a("    s_mov_b32 s19, s18")
    a(f"    s_cmpk_lt_u32 s20, {hi - lo}")

    def st(u, fl):
        r, o = AD[u]
        a(f"    global_store_dwordx4 v{r}, v[{X[u]}:{X[u]+3}], s[10:11]{o} {fl}".rstrip())
    if dup:
        a("    s_cbranch_scc1 L_B")
        for u in range(4):
            math(a, X[u], V[u], T, 2 * (4 - u) - 1 + u, 2 * (4 - u) - 2 + u)
            st(u, stflag)
        a("    s_endpgm")
        a("L_B:")
        for u in range(4):
            math(a, X[u], V[u], T, 2 * (4 - u) - 1 + u, 2 * (4 - u) - 2 + u)
            st(u, stB)
    else:
        for u in range(4):
            math(a, X[u], V[u], T, 2 * (4 - u) - 1 + u, 2 * (4 - u) - 2 + u)
            a(f"    s_cbranch_scc1 L_sB{u}")
            st(u, stflag)
            a(f"    s_branch L_sC{u}")
            a(f"L_sB{u}:")
            st(u, stB)
            a(f"L_sC{u}:")
    a("L_end:")
    a("    s_endpgm")
    nv = T + 8
    a('.section .rodata,"a"'); a(".p2align 6")
    a(f".amdhsa_kernel {NAME}")
    a(f"  .amdhsa_next_free_vgpr {nv}")
    a("  .amdhsa_next_free_sgpr 24")
    a(f"  .amdhsa_accum_offset {(nv+3)//4*4}")
    a("  .amdhsa_group_segment_fixed_size 0")
    a("  .amdhsa_kernarg_size 48")
    a("  .amdhsa_user_sgpr_count 2")
    a("  .amdhsa_user_sgpr_kernarg_segment_ptr 1")
    a("  .amdhsa_system_sgpr_workgroup_id_x 1")
    a("  .amdhsa_float_denorm_mode_32 3")
    a("  .amdhsa_float_denorm_mode_16_64 3")
    a(".end_amdhsa_kernel")
    return "\n".join(L) + "\n"


if __name__ == "__main__":
    out = sys.argv[1]
    kw = {}
    for s in sys.argv[2:]:
        k, v = s.split("=", 1)
        kw[k] = int(v) if v.lstrip("-").isdigit() else v
    open(out, "w").write(gen(**kw))
```

```python
import sys
from gen1 import HEADER, NAME, TOTAL, HALF
from gen19 import math


def gen(ldflag="nt", stflag="none", stB="sc0_sc1", lo=320, hi=1024, dup=0, order="vx", sig=0, d=32, ew=0):
    fx = lambda s: s.replace("_", " ").replace("none", "")
    ldflag, stflag, stB = fx(ldflag), fx(stflag), fx(stB)
    nwg = 1280
    L = []
    a = L.append
    a(HEADER + f"; @launch grid=({nwg},1,1) block=(256,1,1) lds=0")
    a('.amdgcn_target "amdgcn-amd-amdhsa--gfx950"')
    a(".text"); a(f".globl {NAME}"); a(".p2align 8"); a(f".type {NAME},@function"); a(f"{NAME}:")
    a("    s_load_dwordx8 s[4:11], s[0:1], 0")
    a("    s_lshl_b32 s3, s2, 14")
    a(f"    s_cmpk_ge_u32 s2, {nwg}")
    a("    s_cbranch_scc1 L_end")
    a("    s_bitset1_b32 s3, 12")
    a("    v_lshl_add_u32 v1, v0, 4, s3")
    a("    v_add_u32 v2, 0x2000, v1")
    X = [4 + 8 * u for u in range(4)]
    V = [8 + 8 * u for u in range(4)]
    T = 36
    AD = [(1, " offset:-4096"), (1, ""), (2, " offset:-4096"), (2, "")]
    a("    s_waitcnt lgkmcnt(0)")
    if sig == 0:
        a("    s_load_dword s14, s[8:9], 0")
    assert 0 < d < 64 and not dup
    X.append(T + 8); V.append(T + 12)
    AD.append((3, ""))
    for u in range(5):
        r, o = AD[u]
        if u == 3:
            a("    s_bitcmp1_b32 s2, 0")
            a(f"    s_cselect_b32 s12, {256 - d}, -1")
            a(f"    s_cselect_b32 s13, 0, {d}")
            a("    v_cmp_gt_u32 s[24:25], s12, v0")
            if ew:
                a(f"    v_subrev_u32 v3, {64 * ew}, v0")
                a("    v_cmp_gt_u32 s[22:23], s13, v3")
            else:
                a("    v_cmp_gt_u32 s[22:23], s13, v0")
            a(f"    v_add_u32 v3, {32768 - 16 * d - 4096 - 1024 * ew}, v1")
            a("    s_mov_b64 exec, s[24:25]")
        if u == 4:
            a("    s_mov_b64 exec, s[22:23]")
            a("    s_cbranch_execz L_noE")
        a(f"    global_load_dwordx4 v[{V[u]}:{V[u]+3}], v{r}, s[6:7]{o} {ldflag}".rstrip())
        a(f"    global_load_dwordx4 v[{X[u]}:{X[u]+3}], v{r}, s[4:5]{o} {ldflag}".rstrip())
    a("L_noE:")
    a("    s_mov_b64 exec, -1")
    if sig == 1:
        a("    s_load_dword s14, s[8:9], 0")
    a("    s_mov_b32 s16, 0xffff0000")
    a(f"    s_sub_u32 s20, s2, {lo}")
    a("    s_waitcnt lgkmcnt(0)")
    a("    s_lshl_b32 s15, s14, 16")
    a("    s_and_b32 s14, s14, s16")
    a(f"    s_cmpk_ge_u32 s2, {nwg // 2}")
    a("    s_cselect_b32 s18, s14, s15")
    a("    s_mov_b32 s19, s18")
    a(f"    s_cmpk_lt_u32 s20, {hi - lo}")

    def st(u, fl):
        r, o = AD[u]
        a(f"    global_store_dwordx4 v{r}, v[{X[u]}:{X[u]+3}], s[10:11]{o} {fl}".rstrip())
    if dup:
        a("    s_cbranch_scc1 L_B")
        for u in range(4):
            math(a, X[u], V[u], T, 2 * (4 - u) - 1 + u, 2 * (4 - u) - 2 + u)
            st(u, stflag)
        a("    s_endpgm")
        a("L_B:")
        for u in range(4):
            math(a, X[u], V[u], T, 2 * (4 - u) - 1 + u, 2 * (4 - u) - 2 + u)
            st(u, stB)
    else:
        for u in range(5):
            if u == 4:
                a("    s_mov_b64 exec, s[22:23]")
                a("    s_cbranch_execz L_end")
                math(a, X[u], V[u], T, 4, 4)
            else:
                math(a, X[u], V[u], T, 2 * (4 - u) - 1 + u, 2 * (4 - u) - 2 + u)
            if u == 3:
                a("    s_mov_b64 exec, s[24:25]")
            a(f"    s_cbranch_scc1 L_sB{u}")
            st(u, stflag)
            a(f"    s_branch L_sC{u}")
            a(f"L_sB{u}:")
            st(u, stB)
            a(f"L_sC{u}:")
    a("L_end:")
    a("    s_endpgm")
    nv = T + 16
    a('.section .rodata,"a"'); a(".p2align 6")
    a(f".amdhsa_kernel {NAME}")
    a(f"  .amdhsa_next_free_vgpr {nv}")
    a("  .amdhsa_next_free_sgpr 32")
    a(f"  .amdhsa_accum_offset {(nv+3)//4*4}")
    a("  .amdhsa_group_segment_fixed_size 0")
    a("  .amdhsa_kernarg_size 48")
    a("  .amdhsa_user_sgpr_count 2")
    a("  .amdhsa_user_sgpr_kernarg_segment_ptr 1")
    a("  .amdhsa_system_sgpr_workgroup_id_x 1")
    a("  .amdhsa_float_denorm_mode_32 3")
    a("  .amdhsa_float_denorm_mode_16_64 3")
    a(".end_amdhsa_kernel")
    return "\n".join(L) + "\n"


if __name__ == "__main__":
    out = sys.argv[1]
    kw = {}
    for s in sys.argv[2:]:
        k, v = s.split("=", 1)
        kw[k] = int(v) if v.lstrip("-").isdigit() else v
    open(out, "w").write(gen(**kw))
```
